```python
import torch

def _softmax(x, axis=-1):
    return torch.softmax(x, dim=axis)
def _gelu(x):
    return torch.nn.functional.gelu(x, approximate="tanh")
def _silu(x):
    return torch.nn.functional.silu(x)
def _sigmoid(x):
    return torch.sigmoid(x)
def _layernorm(x, axis=-1, eps=1e-5):
    m = x.mean(dim=axis, keepdim=True)
    v = x.var(dim=axis, keepdim=True, unbiased=False)
    return (x - m) / torch.sqrt(v + eps)
def _scatter_add(tgt, idx, src, axis=0):
    return tgt.clone().index_add_(axis, idx, src)
def _segment_sum(src, seg, n):
    out = torch.zeros((n,) + src.shape[1:], dtype=src.dtype)
    return out.index_add_(0, seg, src)
def _pad(x, pw):
    flat = tuple(v for pair in reversed(pw) for v in pair)
    return torch.nn.functional.pad(x, flat)

kernel_name = 'recurrent_scan__sliding_block_cached__swiglu_ffn__prompt'

def setup_inputs():

    _w = (lambda a: (lambda t: t.to(torch.bfloat16) if t.is_floating_point() else t)(torch.as_tensor(a)))
    def _A_setup():
        B, Sq, D = 1, 2048, 640
        Hq, Hkv, Sk, Dh = 32, 32, 2048, 128
        assert Hq % Hkv == 0, (Hq, Hkv)
        return {
            "x": _w((lambda *s: torch.randn(*s, dtype=torch.bfloat16) * 0.05)(B, Sq, D)),
            "k_cache": _w((lambda *s: torch.randn(*s, dtype=torch.bfloat16) * 0.8)(B, Hkv, Sk, Dh)),
            "v_cache": _w((lambda *s: torch.randn(*s, dtype=torch.bfloat16) * 0.2)(B, Hkv, Sk, Dh)),
            "wq": _w((lambda *s: torch.randn(*s, dtype=torch.bfloat16) * 0.8)(D, Hq * Dh) * (D ** -0.5)),
            "wo": _w((lambda *s: torch.randn(*s, dtype=torch.bfloat16) * 0.2)(Hq * Dh, D) * ((Hq * Dh) ** -0.5)),
        }
    _A_in = _A_setup()

    def _B_setup():
        B, S, D, F = 1, 2048, 640, 1728
        return {
            "x": _w((lambda *s: torch.randn(*s, dtype=torch.bfloat16) * 0.05)(B, S, D)),
            "w_gate": _w((lambda *s: torch.randn(*s, dtype=torch.bfloat16) * 0.1)(D, F)),
            "w_up": _w((lambda *s: torch.randn(*s, dtype=torch.bfloat16) * 0.1)(D, F)),
            "w_down": _w((lambda *s: torch.randn(*s, dtype=torch.bfloat16) * 0.1)(F, D)),
        }
    _B_in = _B_setup()

    return {
        "A_x": _A_in["x"],
        "A_k_cache": _A_in["k_cache"],
        "A_v_cache": _A_in["v_cache"],
        "A_wq": _A_in["wq"],
        "A_wo": _A_in["wo"],
        "B_x": _B_in["x"],
        "B_w_gate": _B_in["w_gate"],
        "B_w_up": _B_in["w_up"],
        "B_w_down": _B_in["w_down"],
    }

def reference(A_x, A_k_cache, A_v_cache, A_wq, A_wo, B_x, B_w_gate, B_w_up, B_w_down):
    def _A_ref(x, k_cache, v_cache, wq, wo):
        B, Sq, D = x.shape
        Hq, Dh = 32, 128
        Hkv, Sk = k_cache.shape[1], k_cache.shape[2]
        W = min(4096, max(256, Sk // 4))
        rep = Hq // Hkv
        q = (lambda x, *d: x.permute(*d))((x @ wq).reshape(B, Sq, Hq, Dh), 0, 2, 1, 3)
        k = (lambda x, n, axis: torch.repeat_interleave(x, n, dim=axis))(k_cache[:, :, Sk - W:, :], rep, axis=1)
        v = (lambda x, n, axis: torch.repeat_interleave(x, n, dim=axis))(v_cache[:, :, Sk - W:, :], rep, axis=1)
        scores = torch.einsum("bhqd,bhkd->bhqk", q, k) * (Dh ** -0.5)
        p = _softmax(scores, axis=-1)
        o = torch.einsum("bhqk,bhkd->bhqd", p, v)
        return (lambda x, *d: x.permute(*d))(o, 0, 2, 1, 3).reshape(B, Sq, Hq * Dh) @ wo

    def _B_ref(x, w_gate, w_up, w_down):
        g = _silu(x @ w_gate)
        u = x @ w_up
        return (g * u) @ w_down

    x = A_x
    xn = _layernorm(x, axis=-1)
    s = _A_ref(xn, A_k_cache, A_v_cache, A_wq, A_wo)
    g = _silu(_B_ref(xn, B_w_gate, B_w_up, B_w_down))
    return x + s * g
```

```python
import re

REG_RE = re.compile(r'^(v|a|s)(?:(\d+)|\[(\d+):(\d+)\])$')

def regs_of(tok):
    tok = tok.strip()
    neg = tok.lstrip('-').strip('|')
    m = REG_RE.match(neg)
    if m:
        c = m.group(1)
        if m.group(2) is not None:
            return [(c, int(m.group(2)))]
        return [(c, i) for i in range(int(m.group(3)), int(m.group(4)) + 1)]
    if neg == 'vcc':
        return [('s', 106), ('s', 107)]
    if neg == 'exec':
        return [('s', 126), ('s', 127)]
    if neg == 'm0':
        return [('s', 124)]
    return []

TRANS = ('v_exp_f32', 'v_log_f32', 'v_rcp_f32', 'v_rsq_f32', 'v_sqrt_f32', 'v_sin_f32', 'v_cos_f32')

class I:
    __slots__ = ('text', 'op', 'kind', 'rd', 'wr', 'tag', 'srcc', 'passes', 'waitfor', 'wide', 'srcab')
    def __init__(self, text, tag=None):
        self.text = text
        self.tag = tag
        self.waitfor = None
        self.srcc = []
        self.srcab = []
        self.passes = 0
        self.wide = False
        t = text.split(';')[0].strip()
        if t.endswith(':'):
            self.op = t; self.kind = 'label'; self.rd = []; self.wr = []
            return
        sp = t.split(None, 1)
        op = sp[0]
        self.op = op
        rest = sp[1] if len(sp) > 1 else ''
        parts = [p.strip() for p in rest.split(',')] if rest else []
        mods = ''
        if parts:
            last = parts[-1].split(None, 1)
            parts[-1] = last[0]
            mods = last[1] if len(last) > 1 else ''
        ops = [regs_of(p) for p in parts]
        flat = lambda l: [r for x in l for r in x]
        base = op.replace('_e32', '').replace('_e64', '')
        rd, wr = [], []
        if op.startswith('v_mfma'):
            k = 'mfma'
            wr = ops[0]; rd = flat(ops[1:4]); self.srcc = ops[3]; self.srcab = ops[1] + ops[2]
            self.passes = 8 if '32x32' in op else 4
        elif op.startswith('v_'):
            k = 'trans' if base in TRANS else 'valu'
            if base.startswith('v_permlane32_swap') or base.startswith('v_permlane16_swap') or base.startswith('v_swap'):
                wr = ops[0] + ops[1]; rd = ops[0] + ops[1]; k = 'perm'
            elif base.startswith('v_cmp'):
                wr = ops[0]; rd = flat(ops[1:])
                if base.startswith('v_cmpx'):
                    wr = wr + regs_of('exec')
            elif base in ('v_readfirstlane_b32', 'v_readlane_b32'):
                wr = ops[0]; rd = flat(ops[1:]); k = 'rfl'
            elif base.startswith('v_add_co') or base.startswith('v_sub_co') or base.startswith('v_addc_co'):
                wr = ops[0] + ops[1]; rd = flat(ops[2:])
            else:
                wr = ops[0]; rd = flat(ops[1:])
                if base.startswith('v_fmac') or base.startswith('v_mac') or base.startswith('v_pk_fmac'):
                    rd = rd + ops[0]
                if base == 'v_cndmask_b32' and len(parts) == 3:
                    rd = rd + regs_of('vcc')
        elif op.startswith('ds_read') or op.startswith('ds_bpermute') or op.startswith('ds_permute') or op.startswith('ds_swizzle'):
            k = 'ds'; wr = ops[0]; rd = flat(ops[1:])
        elif op.startswith('ds_write'):
            k = 'ds'; rd = flat(ops)
        elif op.startswith('buffer_load'):
            k = 'vm'
            if ' lds' in (' ' + mods):
                rd = flat(ops) + regs_of('m0'); k = 'dma'
            else:
                wr = ops[0]; rd = flat(ops[1:])
        elif op.startswith('buffer_store'):
            k = 'vmst'; rd = flat(ops)
            if 'x4' in op or 'x3' in op:
                self.wide = True; self.srcab = ops[0]
        elif op.startswith('s_load') or op.startswith('s_memtime') or op.startswith('s_memrealtime'):
            k = 'smem'; wr = ops[0]; rd = flat(ops[1:])
        elif op == 's_waitcnt':
            k = 'wait'
        elif op == 's_nop':
            k = 'nop'
        elif op == 's_barrier':
            k = 'barrier'
        elif op.startswith('s_cbranch') or op == 's_branch' or op == 's_endpgm':
            k = 'branch'
        elif op.startswith('s_cmp') or op == 's_setprio':
            k = 'salu'; rd = flat(ops)
        elif op.startswith('s_'):
            k = 'salu'; wr = ops[0]; rd = flat(ops[1:])
            if 'saveexec' in op:
                wr = wr + regs_of('exec'); rd = rd + regs_of('exec')
        elif op.startswith('.'):
            k = 'dir'
        else:
            raise ValueError('unknown instr: ' + text)
        self.kind = k; self.rd = rd; self.wr = wr

class W:
    def __init__(self, vm=None, lgkm=None):
        self.vm = vm; self.lgkm = lgkm

def mk(x):
    if isinstance(x, (I, W)):
        return x
    if isinstance(x, tuple):
        return I(x[0], tag=x[1])
    return I(x)

VALUK = ('valu', 'trans', 'perm', 'rfl')

def finalize(seq, age=28, stats=None):
    out = []
    pos = 0
    vmq = []
    lgq = []
    smem_out = False
    lastw = {}
    srcc_rd = {}
    st_rd = {}
    nnop = 0; nwait = 0
    def emit(t, n=1):
        nonlocal pos
        out.append('  ' + t)
        pos += n
    def do_wait(nv, nl):
        nonlocal vmq, lgq, nwait, smem_out
        parts = []
        if nv is not None:
            nv = min(nv, 63); parts.append('vmcnt(%d)' % nv)
            vmq = vmq[len(vmq) - nv:] if nv > 0 else []
        if nl is not None:
            nl = min(nl, 15)
            if smem_out:
                nl = 0
            parts.append('lgkmcnt(%d)' % nl)
            lgq = lgq[len(lgq) - nl:] if nl > 0 else []
            if nl == 0:
                smem_out = False
        emit('s_waitcnt ' + ' '.join(parts)); nwait += 1
    def need(q, pred):
        idx = -1
        for i, e in enumerate(q):
            if pred(e):
                idx = i
        return None if idx < 0 else len(q) - 1 - idx
    for x in seq:
        x = mk(x)
        if isinstance(x, W):
            nv = nl = None
            if x.vm is not None:
                nv = (0 if vmq else None) if x.vm == 'all' else need(vmq, lambda e: e[1] in x.vm)
            if x.lgkm is not None:
                nl = (0 if lgq else None) if x.lgkm == 'all' else need(lgq, lambda e: e[1] in x.lgkm)
            if nv is not None or nl is not None:
                do_wait(nv, nl)
            continue
        k = x.kind
        if k in ('label', 'dir'):
            out.append(x.text)
            if k == 'label':
                assert not vmq and not lgq, 'outstanding ops at label ' + x.text
            continue
        if k == 'wait':
            m = re.search(r'vmcnt\((\d+)\)', x.text); nv = int(m.group(1)) if m else None
            m = re.search(r'lgkmcnt\((\d+)\)', x.text); nl = int(m.group(1)) if m else None
            if nv is not None and nv < len(vmq): vmq = vmq[len(vmq) - nv:] if nv else []
            if nl is not None and nl < len(lgq): lgq = lgq[len(lgq) - nl:] if nl else []
            if nl == 0: smem_out = False
            emit(x.text); continue
        if k == 'nop':
            emit(x.text, int(x.text.split()[1], 0) + 1); continue
        touched = set(x.rd) | set(x.wr)
        nv = need(vmq, lambda e: e[0] & touched)
        nl = need(lgq, lambda e: e[0] & touched)
        if nl is not None:
            old = need(lgq, lambda e: pos - e[2] >= age)
            if old is not None:
                nl = min(nl, old)
        if nv is not None or nl is not None:
            do_wait(nv, nl)
        req = 0
        def dist(p):
            return pos - p - 1
        for r in x.rd:
            lw = lastw.get(r)
            if lw is None: continue
            p, pk, pp, pi = lw
            n = 0
            if pk == 'mfma':
                if k == 'mfma':
                    if r in x.srcc and r not in x.srcab:
                        if pi.wr == x.srcc and pi.passes == x.passes: n = 0
                        else: n = 10 if pp == 8 else 6
                    else:
                        n = 12 if pp == 8 else 8
                else:
                    n = 12 if pp == 8 else 8
            elif pk in VALUK:
                if r[0] == 's':
                    if k in ('vm', 'dma', 'vmst'): n = 5
                    elif k in VALUK or k == 'mfma': n = 2
                    if r in (('s', 126), ('s', 127)): n = max(n, 5)
                else:
                    if k == 'mfma': n = 2
                    elif k == 'perm': n = 2
                    elif k == 'rfl': n = 1
                    elif pk == 'trans' and k in VALUK: n = 1
                    elif pk == 'trans': n = 1
            elif pk == 'salu':
                if r == ('s', 124) and k in ('dma',): n = 1
            req = max(req, n - dist(p))
        lw = lastw.get(('s', 126))
        if lw is not None and lw[1] in VALUK and k in ('mfma', 'perm', 'rfl'):
            req = max(req, 5 - dist(lw[0]))
        for r in x.wr:
            lw = lastw.get(r)
            if lw is not None and lw[1] == 'mfma':
                p, pk, pp, pi = lw
                if k == 'mfma':
                    if not (pi.wr == x.wr and pi.passes == x.passes):
                        req = max(req, (10 if pp == 8 else 6) - dist(p))
                    elif x.srcc != x.wr:
                        pass
                else:
                    req = max(req, (12 if pp == 8 else 8) - dist(p))
            sr = srcc_rd.get(r)
            if sr is not None and k != 'mfma':
                req = max(req, (7 if sr[1] == 8 else 3) - dist(sr[0]))
            s2 = st_rd.get(r)
            if s2 is not None:
                req = max(req, 2 - dist(s2))
        while req > 0:
            n = min(req, 16)
            emit('s_nop %d' % (n - 1), n); nnop += 1
            req -= n
        me = pos
        emit(x.text)
        for r in x.wr:
            lastw[r] = (me, k, x.passes, x)
        for r in x.srcc:
            srcc_rd[r] = (me, x.passes)
        if x.wide:
            for r in x.srcab: st_rd[r] = me
        if k in ('vm', 'dma', 'vmst'):
            vmq.append((set(x.wr), x.tag, me))
            assert len(vmq) <= 63, 'too many vm ops outstanding'
        elif k == 'ds':
            lgq.append((set(x.wr), x.tag, me))
        elif k == 'smem':
            lgq.append((set(x.wr), x.tag, me)); smem_out = True
        elif k == 'branch':
            pass
    if stats is not None:
        stats['nops'] = nnop; stats['waits'] = nwait; stats['n'] = len(out)
    return out

def spread(slots, items, a, b):
    n = len(items)
    if n == 0: return
    span = b - a
    for i, it in enumerate(items):
        s = a + (i * span) // n
        if isinstance(it, list):
            slots[s].extend(it)
        else:
            slots[s].append(it)

def weave(spine, slots):
    out = []
    for i, m in enumerate(spine):
        out.append(m)
        out.extend(slots[i])
    return out
```

```python
import sys, os, struct
sys.path.insert(0, os.path.dirname(os.path.abspath(__file__)))
from asmlib import I, W, finalize

NAME = "recurrent_scan__sliding_block_cached__swiglu_ffn__prompt"
KST = 182
RT_BYTES = KST * 4096
WOFF = 0x1800000
WBYTES = KST * 40960
LOG2E = 1.4426950408889634

def f32(x):
    return "0x%08x" % struct.unpack('<I', struct.pack('<f', x))[0]

def vr(b, n=1, c='v'):
    return f"{c}{b}" if n == 1 else f"{c}[{b}:{b+n-1}]"
def ar(b, n=1):
    return vr(b, n, 'a')

def merge(*streams):
    ev = []
    for si, st in enumerate(streams):
        n = len(st)
        for i, it in enumerate(st):
            ev.append(((i + 0.5) / n, si, i, it))
    ev.sort(key=lambda e: (e[0], e[1]))
    return [e[3] for e in ev]

def place(spine, caps, items):
    tot = sum(caps)
    cum = []
    c = 0
    for x in caps:
        c += x; cum.append(c)
    def wt(it):
        if isinstance(it, list): return sum(wt(x) for x in it)
        if isinstance(it, W): return 1
        t = it[0] if isinstance(it, tuple) else it
        if t.startswith('v_exp') or t.startswith('v_rcp'): return 2
        if t.startswith('buffer_'): return 2
        return 1
    wts = [wt(it) for it in items]
    tw = sum(wts)
    slots = [[] for _ in spine]
    acc = 0
    si = 0
    for it, w_ in zip(items, wts):
        p = (acc + 0.5 * w_) / max(tw, 1) * tot
        while si < len(cum) - 1 and cum[si] < p: si += 1
        if isinstance(it, list): slots[si].extend(it)
        else: slots[si].append(it)
        acc += w_
    out = []
    for m, s in zip(spine, slots):
        out.append(m); out.extend(s)
    return out

sW, sH, sRT, sJH = 3, 4, 5, 6
SX, SWQ, SWG, SWU, SK, SV, SA, SRS, SRD_ = 8, 12, 16, 20, 24, 28, 32, 36, 40
sXO0, sXO1, sQO, sFO, sGO = 72, 73, 74, 75, 76
sMQ, sMF, sMX = 77, 78, 79
sMASK, sHB, sT0, sT1, sT2, sT3 = 80, 81, 82, 83, 84, 85
sRLS, sRLD, sMR = 86, 87, 88
def srd(b): return f"s[{b}:{b+3}]"
FACC = 16
XF = 128
ST1, ST2, TMP = 192, 196, 200
CSQ, CSF = 204, 208
AQ, AF, AFX, AX = 212, 216, 220, 221
DX, DQ, DG, DU, DK, DV, AK, AV = 225, 229, 233, 235, 237, 241, 242, 250
OST = 4
vL = 6
vRS = 8
AV2 = AQ
QACC, WF, SEL = 0, 128, 200
OACC, KF, VF = 0, 128, 160
QF = 128
SB = (16, 48)
PB = (80, 96)
NEGM = 112
LS = 192
RLA = 200

KPAGE = {0: 1, 1: 2, 2: 0, 3: 3, 4: 1, 5: 2, 6: 0, 7: 3}
VPAGE = {0: 4, 1: 5, 2: 6, 3: 7, 4: 8, 5: 9, 6: 4, 7: 5}
XCH = 9 * 16384

def k1_prologue():
    p = []
    a = p.append
    a("s_cmp_ge_u32 s2, 256")
    a("s_cbranch_scc1 L_k1_end")
    a("s_load_dwordx16 s[48:63], s[0:1], 0")
    a("s_load_dwordx8 s[64:71], s[0:1], 64")
    a(f"v_and_b32 v{vL}, 63, v0")
    a("v_lshrrev_b32 v1, 6, v0")
    a(f"s_and_b32 s{sH}, s2, 31")
    a(f"s_lshr_b32 s{sRT}, s2, 5")
    a(f"v_readfirstlane_b32 s{sW}, v1")
    a(f"s_sub_u32 s{sT0}, s{sH}, 24")
    a(f"s_cmp_ge_u32 s{sH}, 24")
    a(f"s_cselect_b32 s{sT0}, s{sT0}, s{sH}")
    a(f"s_and_b32 s{sJH}, s{sT0}, 1")
    a(f"s_lshr_b32 s{sT0}, s{sT0}, 1")
    a(f"s_add_u32 s{sHB}, s{sT0}, 96")
    a(f"s_mov_b32 s{sMASK}, 0xffff0000")
    a(f"s_lshl_b32 s{sMQ}, s{sW}, 12")
    a(f"s_lshl_b32 s{sMF}, s{sW}, 11")
    a(f"s_add_u32 s{sMF}, s{sMF}, 49152")
    a(f"s_lshl_b32 s{sMX}, s{sW}, 14")
    a(f"s_add_u32 s{sMX}, s{sMX}, 98304")
    a(f"s_mul_i32 s{sXO0}, s{sJH}, 40960")
    a(f"s_sub_u32 s{sXO1}, 40960, s{sXO0}")
    L = f"v{vL}"
    a(f"v_lshrrev_b32 v1, 4, {L}")
    a(f"v_and_b32 v2, 15, {L}")
    a(f"v_lshlrev_b32 v3, 2, v1")
    a(f"v_xor_b32 v3, v3, v2")
    a(f"v_lshlrev_b32 v3, 4, v3")
    a(f"s_lshl_b32 s{sT0}, s{sW}, 4")
    a(f"v_add_u32 v7, s{sT0}, v1")
    a(f"v_lshl_add_u32 v{DV}, v7, 8, v3")
    a(f"v_lshl_add_u32 v10, v7, 13, v3")
    a(f"s_lshl_b32 s{sT1}, s{sH}, 8")
    a(f"v_add_u32 v{DQ}, s{sT1}, v10")
    for i in range(1, 4):
        a(f"v_add_u32 v{DQ+i}, {i*(32768-1024)}, v{DQ}")
    for i in range(4):
        a(f"v_add_u32 v10, {4*i}, v1")
        a(f"v_xor_b32 v10, v10, v2")
        a(f"v_lshlrev_b32 v10, 4, v10")
        a(f"v_lshl_add_u32 v{DK+i}, v7, 8, v10")
    a(f"v_lshrrev_b32 v1, 3, {L}")
    a(f"v_and_b32 v2, 7, {L}")
    a(f"v_add_u32 v7, s{sT0}, v1")
    a(f"v_mul_u32_u24 v7, 3456, v7")
    a(f"v_and_b32 v3, 1, v2")
    a(f"v_lshl_add_u32 v7, v3, 4, v7")
    a(f"v_and_b32 v3, 2, v1")
    a(f"v_lshrrev_b32 v10, 1, v2")
    a(f"v_xor_b32 v3, v3, v10")
    a(f"s_mul_i32 s{sT1}, s{sH}, 96")
    a(f"s_lshl_b32 s{sT2}, s{sHB}, 5")
    a(f"v_mov_b32 v11, s{sT2}")
    for mat, D in ((0, DG), (1, DU)):
        if mat: a(f"v_xor_b32 v3, 1, v3")
        a(f"v_lshlrev_b32 v10, 5, v3")
        a(f"v_add_u32 v10, s{sT1}, v10")
        a(f"v_cmp_eq_u32 vcc, 3, v3")
        a(f"v_cndmask_b32 v10, v10, v11, vcc")
        a(f"v_add_u32 v{D}, v7, v10")
        a(f"v_add_u32 v{D+1}, {8*3456-1024}, v{D}")
    a(f"s_lshl_b32 s{sT1}, s{sW}, 6")
    a(f"v_add_u32 v7, s{sT1}, v1")
    a(f"v_mul_u32_u24 v7, 1280, v7")
    a(f"v_lshrrev_b32 v3, 1, v1")
    for i in range(4):
        a(f"v_or_b32 v10, {(4*i)&7}, v3")
        a(f"v_xor_b32 v10, v10, v2")
        a(f"v_lshl_add_u32 v10, v10, 4, v7")
        if i: a(f"v_add_u32 v{DX+i}, {i*(10240-1024)}, v10")
        else: a(f"v_mov_b32 v{DX}, v10")
    a("s_waitcnt lgkmcnt(0)")
    def mk(b, lo, nrec, offs=None):
        if offs is None:
            a(f"s_mov_b32 s{b}, s{lo}"); a(f"s_mov_b32 s{b+1}, s{lo+1}")
        else:
            a(f"s_add_u32 s{b}, s{lo}, {offs}"); a(f"s_addc_u32 s{b+1}, s{lo+1}, 0")
        a(f"s_mov_b32 s{b+2}, {nrec}"); a(f"s_mov_b32 s{b+3}, 0x20000")
    mk(SWQ, 54, 5242880)
    mk(SWG, 60, 2211840)
    mk(SWU, 62, 2211840)
    a(f"s_mul_i32 s{sT1}, s{sRT}, 327680")
    mk(SX, 48, 327680, f"s{sT1}")
    return p

def k1_prologue2():
    p = []
    a = p.append
    L = f"v{vL}"
    def mk(b, lo, nrec, offs=None):
        if offs is None:
            a(f"s_mov_b32 s{b}, s{lo}"); a(f"s_mov_b32 s{b+1}, s{lo+1}")
        else:
            a(f"s_add_u32 s{b}, s{lo}, {offs}"); a(f"s_addc_u32 s{b+1}, s{lo+1}, 0")
        a(f"s_mov_b32 s{b+2}, {nrec}"); a(f"s_mov_b32 s{b+3}, 0x20000")
    a(f"s_lshl_b32 s{sT1}, s{sH}, 19")
    a(f"s_add_u32 s{sT1}, s{sT1}, {1536*256}")
    mk(SK, 50, 131072, f"s{sT1}")
    mk(SV, 52, 131072, f"s{sT1}")
    a(f"s_mul_i32 s{sT1}, s{sRT}, {4*RT_BYTES}")
    mk(SA, 70, 4 * RT_BYTES, f"s{sT1}")
    mk(SRD_, 70, WBYTES, WOFF)
    a(f"s_lshl_b32 s{sT1}, s2, 2")
    a(f"s_add_u32 s{sT1}, s{sT1}, s{sW}")
    a(f"s_sub_u32 s{sT2}, s{sT1}, 512")
    a(f"s_cmp_ge_u32 s{sT1}, 910")
    a(f"s_cselect_b32 s{sT1}, s{sT2}, s{sT1}")
    a(f"s_mul_i32 s{sT2}, s{sT1}, 52429")
    a(f"s_lshr_b32 s{sT2}, s{sT2}, 18")
    a(f"s_mul_i32 s{sT3}, s{sT2}, 5")
    a(f"s_sub_u32 s{sT3}, s{sT1}, s{sT3}")
    a(f"s_lshl_b32 s{sRLD}, s{sT1}, 13")
    a(f"s_sub_u32 s{sT1}, s{sT2}, 128")
    a(f"s_cmp_ge_u32 s{sT2}, 128")
    a(f"s_cselect_b32 s{sT2}, s{sT1}, s{sT2}")
    a(f"s_cselect_b32 s{SRS}, s64, s56")
    a(f"s_cselect_b32 s{SRS+1}, s65, s57")
    a(f"s_mov_b32 s{SRS+2}, 5242880")
    a(f"s_cselect_b32 s{SRS+2}, 2211840, s{SRS+2}")
    a(f"s_mov_b32 s{SRS+3}, 0x20000")
    a(f"s_mul_i32 s{sRLS}, s{sT2}, 40960")
    a(f"s_lshl_b32 s{sT3}, s{sT3}, 8")
    a(f"s_add_u32 s{sRLS}, s{sRLS}, s{sT3}")
    a(f"s_lshl_b32 s{sMR}, s{sW}, 13")
    a(f"s_add_u32 s{sMR}, s{sMR}, {6*16384}")
    a(f"v_lshrrev_b32 v1, 5, {L}")
    a(f"v_bfe_u32 v2, {L}, 2, 2")
    a(f"v_and_b32 v3, 3, {L}")
    a(f"v_bfe_u32 v7, {L}, 4, 1")
    a(f"v_and_b32 v10, 1, v3")
    a(f"v_lshlrev_b32 v12, 4, v10")
    a(f"v_lshrrev_b32 v10, 1, v3")
    a(f"v_lshl_add_u32 v12, v10, 3, v12")
    a(f"v_lshl_add_u32 v13, v1, 3, v2")
    a(f"v_lshl_add_u32 v14, v7, 5, v12")
    a(f"v_lshl_add_u32 v15, v13, 8, v14")
    for i in range(4):
        a(f"s_add_u32 s{sT1}, s{sW}, {i}")
        a(f"s_and_b32 s{sT1}, s{sT1}, 3")
        a(f"v_xor_b32 v10, s{sT1}, v2")
        a(f"v_lshl_add_u32 v{AQ+i}, v10, 6, v15")
    a(f"v_lshl_add_u32 v10, v1, 2, v2")
    a(f"v_lshl_add_u32 v15, v10, 8, v14")
    a(f"v_add_u32 v15, 0x10000, v15")
    for i in range(4):
        a(f"v_xor_b32 v10, {i}, v2")
        a(f"v_lshl_add_u32 v{AV+i}, v10, 6, v15")
    a(f"v_lshl_add_u32 v15, v13, 7, v12")
    a(f"v_lshl_add_u32 v15, v7, 13, v15")
    a(f"v_add_u32 v15, 49152, v15")
    a(f"v_and_b32 v14, 2, v2")
    a(f"v_or_b32 v14, v14, v7")
    for i in range(4):
        a(f"v_xor_b32 v10, {i}, v14")
        a(f"v_lshl_add_u32 v{AF+i}, v10, 5, v15")
    a(f"v_xor_b32 v10, s{sW}, v14")
    a(f"v_lshl_add_u32 v{AFX}, v10, 5, v15")
    a(f"v_and_b32 v13, 31, {L}")
    a(f"v_lshlrev_b32 v15, 7, v13")
    a(f"v_add_u32 v15, s{sMX}, v15")
    a(f"v_bfe_u32 v14, {L}, 1, 3")
    a(f"v_xor_b32 v14, v14, v1")
    for i in range(4):
        a(f"v_xor_b32 v10, {2*i}, v14")
        a(f"v_lshl_add_u32 v{AX+i}, v10, 4, v15")
    a(f"v_lshlrev_b32 v15, 8, v13")
    a(f"v_and_b32 v14, 15, {L}")
    a(f"v_xor_b32 v14, v14, v1")
    for i in range(8):
        a(f"s_lshl_b32 s{sT1}, s{sW}, 1")
        a(f"s_add_u32 s{sT1}, s{sT1}, {i}")
        a(f"s_and_b32 s{sT1}, s{sT1}, 7")
        a(f"s_lshl_b32 s{sT1}, s{sT1}, 1")
        a(f"v_xor_b32 v10, s{sT1}, v14")
        a(f"v_lshl_add_u32 v{AK+i}, v10, 4, v15")
    a(f"v_and_b32 v10, 15, {L}")
    a(f"v_lshlrev_b32 v10, 4, v10")
    a(f"v_lshl_add_u32 v10, v1, 8, v10")
    a(f"v_lshl_add_u32 v10, v7, 10, v10")
    a(f"s_mul_i32 s{sT1}, s{sW}, {RT_BYTES}")
    a(f"s_lshl_b32 s{sT2}, s{sJH}, 11")
    a(f"s_add_u32 s{sT3}, s{sT1}, s{sT2}")
    a(f"v_add_u32 v{OST}, s{sT3}, v10")
    a(f"s_sub_u32 s{sT3}, s{sT1}, s{sT2}")
    a(f"s_add_u32 s{sT3}, s{sT3}, 2048")
    a(f"v_add_u32 v{OST+1}, s{sT3}, v10")
    a(f"v_and_b32 v10, 1, {L}")
    a(f"v_cmp_eq_u32 vcc, v10, v7")
    a(f"v_mov_b32 v11, 0x3f803f80")
    a(f"v_cndmask_b32 v10, 0, v11, vcc")
    for i in range(4):
        a(f"v_accvgpr_write_b32 a{SEL+i}, v10")
    for i in range(8):
        a(f"v_mov_b32 v{ST1+i}, 0")
    return p

def dma(voff, s, soff, off, tag):
    o = f" offset:{off}" if off else ""
    return (f"buffer_load_dwordx4 v{voff}, {srd(s)}, {soff} offen{o} lds", tag)

def dma_wq(s):
    g = [[f"s_add_u32 m0, s{sMQ}, {(s%3)*16384}", f"s_mov_b32 s{sQO}, {s*524288}", dma(DQ, SWQ, f"s{sQO}", 0, f"W{s}")]]
    for i in range(1, 4): g.append(dma(DQ+i, SWQ, f"s{sQO}", i*1024, f"W{s}"))
    return g
def dma_wf(s):
    return [[f"s_add_u32 m0, s{sMF}, {(s%3)*16384}", f"s_mov_b32 s{sFO}, {s*221184}", dma(DG, SWG, f"s{sFO}", 0, f"W{s}")],
            dma(DG+1, SWG, f"s{sFO}", 1024, f"W{s}"),
            [f"s_add_u32 m0, s{sMF}, {(s%3)*16384+8192}", dma(DU, SWU, f"s{sFO}", 0, f"W{s}")],
            dma(DU+1, SWU, f"s{sFO}", 1024, f"W{s}")]
def dma_x(s, grp):
    so = sXO0 if grp == 0 else sXO1
    g = [[f"s_add_u32 m0, s{sMX}, {(s%2)*8192+grp*4096}", f"s_add_u32 s{sGO}, s{so}, {s*128}", dma(DX, SX, f"s{sGO}", 0, f"X{s}")]]
    for i in range(1, 4): g.append(dma(DX+i, SX, f"s{sGO}", i*1024, f"X{s}"))
    return g
def dma_k(p):
    g = [[f"s_add_u32 m0, s{sMQ}, {KPAGE[p]*16384}", f"s_mov_b32 s{sGO}, {p*16384}", dma(DK, SK, f"s{sGO}", 0, f"K{p}")]]
    for i in range(1, 4): g.append(dma(DK+i, SK, f"s{sGO}", i*1024, f"K{p}"))
    return g
def dma_v(p):
    g = [[f"s_add_u32 m0, s{sMQ}, {VPAGE[p]*16384}", f"s_mov_b32 s{sGO}, {p*16384}", dma(DV, SV, f"s{sGO}", 0, f"V{p}")]]
    for i in range(1, 4): g.append(dma(DV, SV, f"s{sGO}", i*1024, f"V{p}"))
    return g
def flat(g):
    o = []
    for x in g:
        if isinstance(x, list): o.extend(x)
        else: o.append(x)
    return o

def wfrag(n, f): return WF + 36 * (n % 2) + 4 * f
def w_reads(n):
    s, ks = divmod(n, 4)
    sl = (s % 3) * 16384
    r = []
    for f in range(9):
        d = wfrag(n, f)
        for t in range(2):
            if f < 4: ad, off = AQ + f, sl + ks * 4096 + t * 1024
            else: ad, off = (AF + f - 4 if f < 8 else AFX), sl + ks * 2048 + t * 512
            r.append((f"ds_read_b64_tr_b16 {ar(d+2*t,2)}, v{ad} offset:{off}", f"WR{n}"))
    return r
def xfrag(s, ks, j): return XF + 32 * (s % 2) + (ks * 2 + j) * 4
def x_reads(s):
    return [(f"ds_read_b128 {vr(xfrag(s,ks,j),4)}, v{AX+ks} offset:{(s%2)*8192+j*4096}", f"XR{s}") for ks in range(4) for j in range(2)]
def stats(s, ks):
    r = []
    for j in range(2):
        for q in range(4):
            x = xfrag(s, ks, j) + q
            t = TMP + 2 * (q % 2)
            r += [f"v_lshlrev_b32 v{t}, 16, v{x}", f"v_and_b32 v{t+1}, s{sMASK}, v{x}",
                  f"v_add_f32 v{ST1+2*j}, v{ST1+2*j}, v{t}", f"v_fmac_f32 v{ST2+2*j}, v{t}, v{t}",
                  f"v_add_f32 v{ST1+2*j+1}, v{ST1+2*j+1}, v{t+1}", f"v_fmac_f32 v{ST2+2*j+1}, v{t+1}, v{t+1}"]
    return r
def mf32(d, a, b, c=None):
    return f"v_mfma_f32_32x32x16_bf16 {d}, {a}, {b}, {c if c is not None else d}"
def mf16(d, a, b, c=None):
    return f"v_mfma_f32_16x16x32_bf16 {d}, {a}, {b}, {c if c is not None else d}"
UNITS = [(f, j) for f in range(7) for j in range(2)] + [(7, 0)]
def acc_of(f, j):
    return ar(QACC + 32 * f + 16 * j, 16) if f < 4 else vr(FACC + 16 * (2 * (f - 4) + j), 16)

def k1_phase1():
    p = []
    p += flat(dma_wq(0)) + flat(dma_wf(0)) + flat(dma_x(0, 0)) + flat(dma_x(0, 1))
    p += flat(dma_x(1, 0)) + flat(dma_x(1, 1)) + flat(dma_wq(1)) + flat(dma_wf(1)) + flat(dma_wq(2))
    p += k1_prologue2()
    p += [W(vm=["W0", "X0"]), "s_barrier"]
    p += x_reads(0) + w_reads(0)
    for n in range(40):
        s, ks = divmod(n, 4)
        c0 = "0" if n == 0 else None
        spine = [mf32(acc_of(f, j), ar(wfrag(n, f), 4), vr(xfrag(s, ks, j), 4), c0) for f, j in UNITS]
        spine += [mf16(vr(CSQ, 4), ar(SEL, 4), ar(wfrag(n, 0), 4), c0), mf16(vr(CSF, 4), ar(SEL, 4), ar(wfrag(n, 8), 4), c0)]
        caps = [6] * 15 + [2, 2]
        pre = []
        wr = w_reads(n + 1) if n < 39 else []
        dm = []
        if ks == 0:
            if s + 2 <= 9: dm += dma_wf(s + 2)
            elif s == 8: dm += dma_v(0)
            elif s == 9: dm += dma_v(1)
            if s == 0: dm += [W(lgkm=["XR0"])] + dma_x(2, 0) + dma_x(2, 1)
            if s + 1 <= 9: dm += [W(vm=[f"X{s+1}"])] + x_reads(s + 1)
        elif ks in (1, 2):
            if s + 3 <= 9: dm += ([W(lgkm=[f"XR{s+1}"])] if ks == 1 else []) + dma_x(s + 3, ks - 1)
            elif s == 9: dm += dma_v(1 + ks)
        else:
            if s < 9:
                pre = [W(vm=[f"W{s+1}"], lgkm='all'), "s_barrier"]
            if s + 3 <= 9: dm += dma_wq(s + 3)
            elif s == 7: dm += dma_k(0)
            elif s == 8: dm += dma_k(1)
        st = stats(s, ks)
        if ks == 2:
            items = merge(wr + [[]] * 6, st, dm)
        else:
            items = merge(wr, st, dm)
        items = [it for it in items if it != []]
        if pre:
            body = place(spine[1:], caps[1:], items)
            p += [spine[0]] + pre + body
        else:
            p += place(spine, caps, items)
    return p

def rne_bf16(dst, src):
    return [f"v_cvt_pk_bf16_f32 v{dst}, v{src}, v{src}", f"v_and_b32 v{dst}, s{sMASK}, v{dst}"]

def k1_mid():
    p = []
    a = p.append
    L = f"v{vL}"
    a(f"v_and_b32 v10, 16, {L}")
    a(f"v_cmp_eq_u32 vcc, 0, v10")
    a(f"v_and_b32 v10, 31, {L}")
    a(f"v_lshlrev_b32 v10, 4, v10")
    a(f"v_add_u32 v11, {XCH}, v10")
    a(f"s_lshl_b32 s{sT0}, s{sW}, 9")
    a(f"v_add_u32 v10, s{sT0}, v11")
    a(f"v_mov_b32 v14, 0")
    a(f"v_mov_b32 v15, 0")
    for cs, off in ((CSQ, 0), (CSF, 2048)):
        a(f"v_cndmask_b32 v1, v{cs+1}, v{cs}, vcc")
        a(f"v_and_b32 v2, s{sMASK}, v1")
        a(f"v_sub_f32 v1, v1, v2")
        a(f"v_and_b32 v3, s{sMASK}, v1")
        a(f"v_sub_f32 v1, v1, v3")
        a(f"v_lshrrev_b32 v13, 16, v1")
        a(f"v_lshrrev_b32 v2, 16, v2")
        a(f"v_or_b32 v12, v2, v3")
        a(f"ds_write_b128 v10, v[12:15] offset:{off}")
    for j in range(2):
        s1, s2 = ST1 + 2 * j, ST2 + 2 * j
        a(f"v_add_f32 v{s1}, v{s1}, v{s1+1}")
        a(f"v_add_f32 v{s2}, v{s2}, v{s2+1}")
        a(f"v_mov_b32 v{s1+1}, v{s1}")
        a(f"v_mov_b32 v{s2+1}, v{s2}")
        a(f"v_permlane32_swap_b32 v{s1}, v{s1+1}")
        a(f"v_permlane32_swap_b32 v{s2}, v{s2+1}")
        a(f"v_add_f32 v{s1}, v{s1}, v{s1+1}")
        a(f"v_add_f32 v{s2}, v{s2}, v{s2+1}")
        a(f"v_mul_f32 v{s1}, {f32(1/640)}, v{s1}")
        a(f"v_mul_f32 v{s2}, {f32(1/640)}, v{s2}")
        a(f"v_fma_f32 v{s2}, -v{s1}, v{s1}, v{s2}")
        a(f"v_max_f32 v{s2}, 0, v{s2}")
        p += rne_bf16(s2, s2)
        a(f"v_add_f32 v{s2}, {f32(1e-5)}, v{s2}")
        p += rne_bf16(s2, s2)
        a(f"v_sqrt_f32 v{s2}, v{s2}")
        p += rne_bf16(s2, s2)
        a(f"v_rcp_f32 v{vRS+j}, v{s2}")
        a(f"v_mul_f32 v{s2+1}, v{s2}, v{s2}")
        a(f"v_cvt_pk_bf16_f32 v{s1}, -v{s1}, -v{s1}")
        a(f"v_cmp_gt_u32 vcc, 32, {L}")
        b2 = TMP + 4 * j
        a(f"v_cndmask_b32 v{b2}, 0, v{s1}, vcc")
        a(f"v_and_b32 v{b2+1}, 0xffff, v{b2}")
        a(f"v_mov_b32 v{b2+2}, 0")
        a(f"v_mov_b32 v{b2+3}, 0")
    p += [W(vm=["K0", "K1", "V0"], lgkm='all'), "s_barrier"]
    for i in range(4):
        a(f"s_add_u32 s{sT1}, s{sW}, {i}")
        a(f"s_and_b32 s{sT1}, s{sT1}, 3")
        a(f"s_lshl_b32 s{sT1}, s{sT1}, 9")
        a(f"v_add_u32 v{12+i}, s{sT1}, v11")
    for i in range(4):
        a(f"ds_read_b128 {ar(WF+4*i,4)}, v{12+i}")
    for i in range(4):
        a(f"ds_read_b128 {ar(WF+16+4*i,4)}, v11 offset:{2048+512*i}")
    p += flat(dma_k(2)) + flat(dma_k(3)) + flat(dma_v(4))
    for f, j in UNITS:
        a(mf32(acc_of(f, j), ar(WF + 4 * f, 4), vr(TMP + 4 * j, 4)))
    for i in range(4):
        a(f"v_add_u32 v{AV2+i}, 0x10000, v{AV+i}")
    p += k_reads(0)
    for j in range(2):
        a(f"v_mul_f32 v{10+j}, {f32(LOG2E * 128 ** -0.5)}, v{vRS+j}")
    for i in range(4):
        for j in range(2):
            for e in range(8):
                src = QACC + 32 * i + 16 * j + 2 * e
                t = 12 + 2 * (e % 2)
                a(f"v_accvgpr_read_b32 v{t}, a{src}")
                a(f"v_accvgpr_read_b32 v{t+1}, a{src+1}")
                a(f"v_mul_f32 v{t}, v{10+j}, v{t}")
                a(f"v_mul_f32 v{t+1}, v{10+j}, v{t+1}")
                a(f"v_cvt_pk_bf16_f32 v{qfrag(2*i+e//4, j)+e%4}, v{t}, v{t+1}")
    for j in range(2):
        a(f"v_mul_f32 v{10+j}, {f32(-LOG2E)}, v{vRS+j}")
    for u, (f, j) in enumerate(UNITS[8:]):
        b = FACC + 16 * u
        isq = ST2 + 2 * j + 1
        for e in range(8):
            a(f"v_mul_f32 v{b+8+e}, v{b+e}, v{b+8+e}")
            a(f"v_mul_f32 v{b+e}, v{10+j}, v{b+e}")
        for e in range(8):
            a(f"v_exp_f32 v{b+e}, v{b+e}")
        for e in range(8):
            a(f"v_fma_f32 v{b+e}, v{b+e}, v{isq}, v{isq}")
        for e in range(8):
            a(f"v_rcp_f32 v{b+e}, v{b+e}")
        for e in range(8):
            a(f"v_mul_f32 v{b+e}, v{b+e}, v{b+8+e}")
        for e in range(4):
            a(f"v_cvt_pk_bf16_f32 v{b+8+e}, v{b+2*e}, v{b+2*e+1}")
        fb = f - 4
        if j == 0:
            if fb < 3:
                a(f"s_mul_i32 s{sT0}, s{sH}, 3")
                a(f"s_add_u32 s{sT0}, s{sT0}, {fb}")
            else:
                a(f"s_mov_b32 s{sT0}, s{sHB}")
            a(f"s_lshr_b32 s{sT1}, s{sT0}, 1")
            a(f"s_lshl_b32 s{sT1}, s{sT1}, 12")
            a(f"s_and_b32 s{sT0}, s{sT0}, 1")
            a(f"s_lshl_b32 s{sT0}, s{sT0}, 9")
            a(f"s_add_u32 s{sT0}, s{sT0}, s{sT1}")
            a(f"s_add_u32 s{sT0}, s{sT0}, {128*4096}")
        a(f"buffer_store_dwordx4 {vr(b+8,4)}, v{OST+j}, {srd(SA)}, s{sT0} offen")
    return p

def qfrag(i, j): return QF + (i * 2 + j) * 4
def k_reads(b):
    off = KPAGE[b // 2] * 16384 + (b & 1) * 8192
    return [(f"ds_read_b128 {ar(KF+4*i,4)}, v{AK+i} offset:{off}", f"KR{b}") for i in range(8)]
def v_reads(b):
    pg = VPAGE[b // 2] - 4
    base = AV
    if pg >= 4: pg -= 4; base = AV2
    r = []
    for db in range(4):
        for kk in range(2):
            d = VF + (db * 2 + kk) * 4
            for t in range(2):
                off = pg * 16384 + ((b & 1) * 32 + kk * 16 + t * 8) * 256
                r.append((f"ds_read_b64_tr_b16 {ar(d+2*t,2)}, v{base+db} offset:{off}", f"VR{b}"))
    return r
def qk(b, c0):
    r = []
    for i in range(8):
        for j in range(2):
            d = vr(SB[b % 2] + 16 * j, 16)
            r.append(mf32(d, ar(KF + 4 * i, 4), vr(qfrag(i, j), 4), c0 if i == 0 else None))
    return r
def pv(b):
    r = []
    for db in range(4):
        for kk in range(2):
            for j in range(2):
                d = ar(OACC + 32 * db + 16 * j, 16)
                r.append(mf32(d, ar(VF + (db * 2 + kk) * 4, 4), vr(PB[b % 2] + 8 * j + 4 * kk, 4), "0" if (b == 0 and kk == 0) else None))
    return r
def softmax(b, sub=False):
    r = []
    S = SB[b % 2]; P = PB[b % 2]
    pend = []
    for e in range(0, 32, 2):
        j = e // 16
        if sub:
            r += [f"v_add_f32 v{S+e}, v{NEGM}, v{S+e}", f"v_add_f32 v{S+e+1}, v{NEGM}, v{S+e+1}"]
        r += [f"v_exp_f32 v{S+e}, v{S+e}"]
        r += pend[:2]
        r += [f"v_exp_f32 v{S+e+1}, v{S+e+1}"]
        r += pend[2:]
        if b == 0 and e % 16 == 0:
            pend = [f"v_mov_b32 v{LS+2*j}, v{S+e}", f"v_mov_b32 v{LS+2*j+1}, v{S+e+1}"]
        else:
            pend = [f"v_add_f32 v{LS+2*j}, v{LS+2*j}, v{S+e}", f"v_add_f32 v{LS+2*j+1}, v{LS+2*j+1}, v{S+e+1}"]
        pend.append(f"v_cvt_pk_bf16_f32 v{P+e//2}, v{S+e}, v{S+e+1}")
    r += pend
    return r

def relayout_dma():
    g = []
    for i in range(8):
        pre = []
        if i % 4 == 0: pre.append(f"s_add_u32 m0, s{sMR}, {i*1024}")
        pre.append(f"s_add_u32 s{sGO}, s{sRLS}, {i*5120-(i%4)*1024}")
        g.append(pre + [dma(RLA + 1, SRS, f"s{sGO}", (i % 4) * 1024, "RL")])
    return g

def k1_attn():
    p = []
    a = p.append
    L = f"v{vL}"
    p += qk(0, "0")
    p += k_reads(1)
    S = SB[0]
    a(f"v_max3_f32 v12, v{S}, v{S+1}, v{S+2}")
    a(f"v_max3_f32 v13, v{S+3}, v{S+4}, v{S+5}")
    for e in range(6, 32, 4):
        a(f"v_max3_f32 v12, v12, v{S+e}, v{S+e+1}")
        if e + 2 < 32: a(f"v_max3_f32 v13, v13, v{S+e+2}, v{S+e+3}")
    a(f"v_max_f32 v12, v12, v13")
    a(f"v_mov_b32 v13, v12")
    a(f"v_permlane32_swap_b32 v12, v13")
    a(f"v_max_f32 v12, v12, v13")
    for e in range(16):
        a(f"v_mul_f32 v{NEGM+e}, -1.0, v12")
    rl_setup = [
        f"v_lshrrev_b32 v12, 4, {L}", f"v_and_b32 v13, 15, {L}", f"v_mul_u32_u24 v14, 1280, v12",
        f"v_lshl_add_u32 v{RLA+1}, v13, 4, v14",
        f"v_bfe_u32 v13, {L}, 2, 2", f"v_lshl_add_u32 v12, v12, 3, v13", f"v_and_b32 v13, 3, {L}",
        f"v_lshlrev_b32 v13, 3, v13", f"v_lshl_add_u32 v12, v12, 8, v13", f"v_add_u32 v{RLA+2}, s{sMR}, v12",
        f"v_lshlrev_b32 v{RLA}, 4, {L}"]
    negm = vr(NEGM, 16)
    for i in range(0, 17):
        q = qk(i + 1, negm) if i + 1 <= 15 else []
        v = pv(i - 1) if i >= 1 else []
        sm = softmax(i, sub=(i == 0)) if i <= 15 else []
        vrd = v_reads(i - 1) if i >= 1 else []
        krd = k_reads(i + 2) if i + 2 <= 15 else []
        d1, d2 = [], []
        pre2 = []
        if i == 2:
            pre2 = [W(vm=["K2", "K3", "V1", "V2"], lgkm='all'), "s_barrier"]; d2 = dma_k(4)
        if i == 3: d1 = dma_k(5); d2 = dma_v(5)
        if i == 4: d1 = dma_v(6)
        if i == 6:
            pre2 = [W(vm=["K4", "K5", "V3", "V4"], lgkm='all'), "s_barrier"]; d2 = dma_k(6)
        if i == 7: d1 = dma_k(7); d2 = dma_v(7)
        if i == 9: d2 = rl_setup
        if i == 10:
            pre2 = [W(vm=["K6", "K7", "V5", "V6", "V7"], lgkm='all'), "s_barrier"]; d2 = relayout_dma()[:4]
        if i == 11: d1 = relayout_dma()[4:]
        if i in (13, 14):
            hf = i - 13
            rd = []
            if hf == 0: rd.append(W(vm=["RL"]))
            for f in range(4):
                for t in range(2):
                    rd.append(f"ds_read_b64_tr_b16 {vr(216+4*f+2*t,2)}, v{RLA+2} offset:{t*1024+(hf*4+f)*32}")
            stt = [f"s_add_u32 s{sGO}, s{sRLD}, {hf*4096}"]
            for f in range(4):
                stt.append(f"buffer_store_dwordx4 {vr(216+4*f,4)}, v{RLA}, {srd(SRD_)}, s{sGO} offen offset:{f*1024}")
            d2 = rd + stt
        if q and v:
            h = len(sm) // 2 - 4
            p += place(q, [6] * 16, merge(vrd + [[]] * 3, sm[:h], d1))
            it2 = merge(krd, sm[h:], d2)
            if pre2:
                p += [v[0]] + pre2 + place(v[1:], [6] * 15, it2)
            else:
                p += place(v, [6] * 16, it2)
        elif q:
            p += place(q, [6] * 16, merge(sm))
            p += krd
        elif sm:
            p += vrd
            p += place(v, [6] * 16, merge(sm))
        else:
            fin = []
            for j in range(2):
                l0 = LS + 2 * j
                fin += [f"v_add_f32 v{l0}, v{l0}, v{l0+1}", f"v_mov_b32 v{l0+1}, v{l0}",
                        f"v_permlane32_swap_b32 v{l0}, v{l0+1}", f"v_add_f32 v{l0}, v{l0}, v{l0+1}",
                        f"v_rcp_f32 v{l0+1}, v{l0}"]
            p += vrd
            p += place(v, [6] * 16, fin)
    p = [x for x in p if x != []]
    return p

def k1_out():
    p = []
    a = p.append
    a(f"s_lshl_b32 s{sT0}, s{sH}, 14")
    n = 0
    for db in range(4):
        if db: a(f"s_add_u32 s{sT0}, s{sT0}, 4096")
        for j in range(2):
            for c in range(2):
                o = 16 + 4 * (n % 8); n += 1
                for e in range(4):
                    src = OACC + 32 * db + 16 * j + 8 * c + 2 * e
                    t = 48 + 2 * (e % 2)
                    a(f"v_accvgpr_read_b32 v{t}, a{src}")
                    a(f"v_accvgpr_read_b32 v{t+1}, a{src+1}")
                    a(f"v_mul_f32 v{t}, v{LS+2*j+1}, v{t}")
                    a(f"v_mul_f32 v{t+1}, v{LS+2*j+1}, v{t+1}")
                    a(f"v_cvt_pk_bf16_f32 v{o+e}, v{t}, v{t+1}")
                a(f"buffer_store_dwordx4 {vr(o,4)}, v{OST+j}, {srd(SA)}, s{sT0} offen offset:{c*512}")
    return p

def gen_k1():
    seq = k1_prologue() + k1_phase1() + k1_mid() + k1_attn() + k1_out()
    st = {}
    body = finalize(seq, stats=st)
    sys.stderr.write(f"K1: {st}\n")
    return ["k1_kernel:"] + body + ["L_k1_end:", "  s_endpgm"]

def gen_k2(depth=6):
    p = []
    a = p.append
    sA, sB, sXs, sO = 8, 12, 16, 20
    BUF = 16
    a("s_cmp_ge_u32 s2, 256")
    a("s_cbranch_scc1 L_k2_end")
    a("s_load_dwordx2 s[24:25], s[0:1], 0")
    a("s_load_dwordx2 s[26:27], s[0:1], 72")
    a("s_load_dwordx2 s[28:29], s[0:1], 88")
    a("v_and_b32 v1, 63, v0")
    a("v_lshrrev_b32 v2, 6, v0")
    a("s_and_b32 s4, s2, 7")
    a("s_lshl_b32 s4, s4, 2")
    a("v_readfirstlane_b32 s3, v2")
    a("s_lshr_b32 s5, s2, 3")
    a("s_and_b32 s6, s5, 3")
    a("s_add_u32 s4, s4, s6")
    a("s_lshr_b32 s5, s5, 2")
    a("v_lshlrev_b32 v3, 4, v1")
    for i in range(4):
        a(f"s_add_u32 s6, s3, {i}")
        a(f"s_and_b32 s6, s6, 3")
        a(f"s_lshl_b32 s6, s6, 10")
        a(f"v_add_u32 v{4+i}, s6, v3")
    a("v_add_u32 v8, 4096, v3")
    a("s_waitcnt lgkmcnt(0)")
    a(f"s_mul_i32 s6, s4, {RT_BYTES}")
    a(f"s_add_u32 s{sA}, s28, s6"); a(f"s_addc_u32 s{sA+1}, s29, 0"); a(f"s_mov_b32 s{sA+2}, {RT_BYTES}"); a(f"s_mov_b32 s{sA+3}, 0x20000")
    a(f"s_add_u32 s{sB}, s28, {WOFF}"); a(f"s_addc_u32 s{sB+1}, s29, 0"); a(f"s_mov_b32 s{sB+2}, {WBYTES}"); a(f"s_mov_b32 s{sB+3}, 0x20000")
    a("s_min_u32 s6, s3, 2")
    a("s_mul_i32 s7, s3, 13")
    a("s_add_u32 s6, s6, s7")
    a("s_add_u32 s6, s6, 128")
    a("s_lshl_b32 s30, s6, 12")
    a("s_mul_i32 s31, s6, 40960")
    a("s_mul_i32 s7, s5, 5120")
    a("s_add_u32 s31, s31, s7")
    a("s_lshl_b32 s32, s3, 17")
    a(f"s_mul_i32 s33, s3, {32*40960}")
    a("s_add_u32 s33, s33, s7")
    a("s_cmp_ge_u32 s3, 2")
    a("s_movk_i32 s34, 4096")
    a("s_cselect_b32 s34, 0x10000000, s34")
    NS = 46
    def loads(n):
        b = BUF + (n % depth) * 36
        r = []
        if n == 14:
            r += ["s_mov_b32 s30, s32", "s_mov_b32 s31, s33"]
        for i in range(4):
            r.append(f"buffer_load_dwordx4 {vr(b+4*i,4)}, v{4+i}, {srd(sA)}, s30 offen")
        for i in range(4):
            o = f" offset:{i*1024}" if i else ""
            r.append(f"buffer_load_dwordx4 {vr(b+16+4*i,4)}, v3, {srd(sB)}, s31 offen{o}")
        r.append(f"buffer_load_dwordx4 {vr(b+32,4)}, v8, {srd(sB)}, s31 offen")
        r.append("s_add_u32 s30, s30, " + ("s34" if n == 12 else "4096"))
        r.append("s_add_u32 s31, s31, 40960")
        return r
    def comp(n):
        b = BUF + (n % depth) * 36
        base = 0 if n < 14 else 80
        r = []
        for i in range(4):
            for c in range(5):
                d = ar(base + (i * 5 + c) * 4, 4)
                r.append(mf16(d, vr(b + 16 + 4 * c, 4), vr(b + 4 * i, 4), "0" if n in (0, 14) else None))
        return r
    for n in range(depth - 1):
        p += loads(n)
    a(f"s_mov_b32 s{sXs}, s24"); a(f"s_mov_b32 s{sXs+1}, s25"); a(f"s_mov_b32 s{sXs+2}, 2621440"); a(f"s_mov_b32 s{sXs+3}, 0x20000")
    a(f"s_mov_b32 s{sO}, s26"); a(f"s_mov_b32 s{sO+1}, s27"); a(f"s_mov_b32 s{sO+2}, 2621440"); a(f"s_mov_b32 s{sO+3}, 0x20000")
    a("s_lshl_b32 s6, s4, 6")
    a("s_lshl_b32 s7, s3, 4")
    a("s_add_u32 s6, s6, s7")
    a("s_mul_i32 s6, s6, 1280")
    a("s_mul_i32 s7, s5, 160")
    a("s_add_u32 s35, s6, s7")
    a("v_and_b32 v9, 15, v1")
    a("v_mul_u32_u24 v9, 1280, v9")
    a("v_lshrrev_b32 v10, 4, v1")
    a("v_lshl_add_u32 v9, v10, 3, v9")
    for i in range(1, 4):
        a(f"s_add_u32 s6, s3, {i}")
        a(f"s_and_b32 s6, s6, 3")
        a(f"s_mul_i32 s6, s6, 30720")
        a(f"s_add_u32 s6, s6, {(i-1)*10240}")
        a(f"v_add_u32 v{10+i}, s6, v3")
    a("s_mul_i32 s6, s3, 30720")
    a("v_add_u32 v10, s6, v3")
    XR = BUF + depth * 36
    def xchg_w(part):
        r = []
        for i in range(1, 4):
            for c in range(5):
                r.append(f"ds_write_b128 v{10+i}, {ar(part*80+(i*5+c)*4,4)} offset:{part*5120+c*1024}")
        return r
    for n in range(NS):
        ld = loads(n + depth - 1) if n + depth - 1 < NS else []
        cm = comp(n)
        extra = []
        if n == 16: extra = xchg_w(0)
        if n == NS - depth + 1:
            extra = [f"buffer_load_dwordx2 {vr(XR+2*c,2)}, v9, {srd(sXs)}, s35 offen offset:{c*32}" for c in range(5)]
        p += ld + place(cm, [1] * 20, extra)
    p += xchg_w(1)
    p += [W(lgkm='all'), "s_barrier"]
    R = BUF
    for i in range(3):
        for part in range(2):
            for c in range(5):
                a(f"ds_read_b128 {vr(R+((i*2+part)*5+c)*4,4)}, v10 offset:{i*10240+part*5120+c*1024}")
    T = R + 120
    for part in range(2):
        for e in range(20):
            a(f"v_accvgpr_read_b32 v{T+part*20+e}, a{part*80+e}")
    for i in range(3):
        for part in range(2):
            for e in range(20):
                a(f"v_add_f32 v{T+part*20+e}, v{T+part*20+e}, v{R+(i*2+part)*20+e}")
    D, S = T, T + 20
    U = R
    a("s_mov_b32 s36, 0xffff0000")
    for e in range(20):
        a(f"v_mul_f32 v{U+e}, {f32(-LOG2E)}, v{D+e}")
    for e in range(20):
        a(f"v_exp_f32 v{U+e}, v{U+e}")
    for e in range(20):
        a(f"v_add_f32 v{U+e}, 1.0, v{U+e}")
    for e in range(20):
        a(f"v_rcp_f32 v{U+e}, v{U+e}")
    for e in range(20):
        a(f"v_mul_f32 v{D+e}, v{D+e}, v{S+e}")
    for c in range(5):
        for hf in range(2):
            x = XR + 2 * c + hf
            e = 4 * c + 2 * hf
            a(f"v_lshlrev_b32 v{S+e}, 16, v{x}")
            a(f"v_and_b32 v{S+e+1}, s36, v{x}")
            a(f"v_fmac_f32 v{S+e}, v{D+e}, v{U+e}")
            a(f"v_fmac_f32 v{S+e+1}, v{D+e+1}, v{U+e+1}")
            a(f"v_cvt_pk_bf16_f32 v{x}, v{S+e}, v{S+e+1}")
        a(f"buffer_store_dwordx2 {vr(XR+2*c,2)}, v9, {srd(sO)}, s35 offen offset:{c*32}")
    st = {}
    body = finalize(p, stats=st)
    sys.stderr.write(f"K2: {st}\n")
    nv = XR + 10
    return ["k2_kernel:"] + body + ["L_k2_end:", "  s_endpgm"], nv

def kd(name, nv, acc):
    return f""".p2align 6
.amdhsa_kernel {name}
  .amdhsa_next_free_vgpr {nv}
  .amdhsa_next_free_sgpr 102
  .amdhsa_accum_offset {acc}
  .amdhsa_group_segment_fixed_size 0
  .amdhsa_kernarg_size 96
  .amdhsa_user_sgpr_count 2
  .amdhsa_user_sgpr_kernarg_segment_ptr 1
  .amdhsa_system_sgpr_workgroup_id_x 1
.end_amdhsa_kernel
"""

def main(out):
    k1 = gen_k1()
    k2, nv2 = gen_k2()
    assert nv2 <= 256
    s = []
    s.append("; @launch kernel=k1_kernel grid=(256,1,1) block=(256,1,1) lds=163840")
    s.append("; @launch kernel=k2_kernel grid=(256,1,1) block=(256,1,1) lds=122880")
    s.append('.amdgcn_target "amdgcn-amd-amdhsa--gfx950"')
    s.append(".text")
    for nm, body in (("k1_kernel", k1), ("k2_kernel", k2)):
        s.append(f".globl {nm}\n.p2align 8\n.type {nm},@function")
        s += body
    s.append('.section .rodata,"a"')
    s.append(kd("k1_kernel", 512, 256))
    s.append(kd("k2_kernel", 256 + 160, 256))
    open(out, "w").write("\n".join(s) + "\n")

if __name__ == "__main__":
    main(sys.argv[1] if len(sys.argv) > 1 else f"cdna_kernels/{NAME}.s")
```
